```python
import torch

def _softmax(x, axis=-1):
    return torch.softmax(x, dim=axis)

def _gelu(x):
    return torch.nn.functional.gelu(x, approximate='tanh')

def _silu(x):
    return torch.nn.functional.silu(x)

def _sigmoid(x):
    return torch.sigmoid(x)

def _layernorm(x, axis=-1, eps=1e-05):
    m = x.mean(dim=axis, keepdim=True)
    v = x.var(dim=axis, keepdim=True, unbiased=False)
    return (x - m) / torch.sqrt(v + eps)

def _scatter_add(tgt, idx, src, axis=0):
    return tgt.clone().index_add_(axis, idx, src)

def _segment_sum(src, seg, n):
    out = torch.zeros((n,) + src.shape[1:], dtype=src.dtype)
    return out.index_add_(0, seg, src)

def _pad(x, pw):
    flat = tuple((v for pair in reversed(pw) for v in pair))
    return torch.nn.functional.pad(x, flat)
kernel_name = 'standalone__varlen_attn_packed__ragged'

def setup_inputs():

    _w = lambda a: (lambda t: t.to(torch.bfloat16) if t.is_floating_point() else t)(torch.as_tensor(a))
    cu = torch.tensor([0, 992, 1451, 1933, 2583, 3189, 3578, 4512, 5082], dtype=torch.int64)
    T, H, D = (int(cu[-1]), 16, 128)
    return {'q': _w((lambda *s: torch.randn(*s, dtype=torch.bfloat16) * 0.8)(T, H, D)), 'k': _w((lambda *s: torch.randn(*s, dtype=torch.bfloat16) * 0.8)(T, H, D)), 'v': _w((lambda *s: torch.randn(*s, dtype=torch.bfloat16) * 0.05)(T, H, D)), 'cu': _w(cu)}

def reference(q, k, v, cu):
    T, H, D = q.shape
    out = torch.zeros_like(q)
    scale = D ** (-0.5)
    outs = []
    for i in range(len(cu) - 1):
        s, e = (int(cu[i]), int(cu[i + 1]))
        qi, ki, vi = (q[s:e].clone(), k[s:e].clone(), v[s:e].clone())
        p = _softmax(torch.einsum('qhd,khd->hqk', qi, ki) * scale, axis=-1)
        outs.append(torch.einsum('hqk,khd->qhd', p, vi))
    return torch.concatenate(outs, axis=0)
```

```python
import sys, struct, math

CU = [0, 992, 1451, 1933, 2583, 3189, 3578, 4512, 5082]
LEN = [CU[i+1]-CU[i] for i in range(8)]
NAME = "standalone__varlen_attn_packed__ragged"

class Cfg:
    R = 5
    unroll = 1
    stamp = False
    force_exact = False
    cap_bar = 0
    cap_br = 8
    roles = None
cfg = Cfg()

OA, OB = 0, 64
SA, SB = 128, 144
PA, PB = 160, 168
LA, LB = 176, 178
NMA, NMB = 180, 181
VKRD, VVRD, VK0, VV0 = 182, 183, 184, 185
VOK, VOK2, VOV, VOV2 = 186, 187, 188, 189
VOQ, VQRD, VOO = 190, 191, 192
MGA, MGB = 193, 194
VH4 = 195
CM = 196
T0 = 212
PK = 224
VMX = 220
QA, QB, KF, VF, KX = 0, 32, 64, 96, 128

S_Q, S_K, S_V, S_O = 4, 8, 12, 16
sWAVE, sP1, sP2, sHB = 20, 21, 22, 23
sOFF, sNOFF, sNEND = 24, 25, 26
sWR, sRD, sCNT, sVD, sWREND, sWR0 = 28, 29, 30, 31, 32, 33
sC, sQOFF, sTAIL, sEXACT = 34, 35, 36, 37
sBAD = 38
sT = 40
sNC = 48
sN = 49
sQL = 50
sBASE = 51
sP1S, sP2S = 52, 53
sNQOFF = 54
sTHR = 55
sST = 60
S_W = 68

KP, VP = 1056, 1088
KT, VT = 8*KP, 8*VP
SL = KT + VT
def lds_layout():
    ring = cfg.R * SL
    q = ring
    fl = q + 4 * 16 * KP
    return ring, q, fl, fl + 64

def v(b, n=1): return f"v{b}" if n == 1 else f"v[{b}:{b+n-1}]"
def a(b, n=1): return f"a{b}" if n == 1 else f"a[{b}:{b+n-1}]"
def s(b, n=1): return f"s{b}" if n == 1 else f"s[{b}:{b+n-1}]"
def fbits(x): return struct.unpack("<I", struct.pack("<f", x))[0]

class E:
    def __init__(self): self.l = []
    def __call__(self, x):
        if isinstance(x, (list, tuple)):
            for y in x: self(y)
        else:
            self.l.append(x if x.endswith(":") or x.startswith(".") or x.startswith(";") else "    " + x)
    def text(self): return "\n".join(self.l) + "\n"

def qk(g, st, c=None):
    S = SA if g == "A" else SB
    Q = QA if g == "A" else QB
    if c is None: c = v(S, 16) if st else "0"
    return f"v_mfma_f32_32x32x16_bf16 {v(S,16)}, {a(KF+4*st,4)}, {a(Q+4*st,4)}, {c}"
def pv(g, f, first=False):
    ks, dt = f // 4, f % 4
    O = (OA if g == "A" else OB) + 16*dt
    P = (PA if g == "A" else PB) + 4*ks
    c = "0" if (first and ks == 0) else v(O, 16)
    return f"v_mfma_f32_32x32x16_bf16 {v(O,16)}, {a(VF+4*f,4)}, {v(P,4)}, {c}"
def rdK(st): return f"ds_read_b128 {a(KF+4*st,4)}, {v(VKRD)} offset:{st*32}"
def rdV(f, j4):
    ks, dt = f // 4, f % 4
    return f"ds_read_b64_tr_b16 {a(VF+4*f+2*j4,2)}, {v(VVRD)} offset:{KT + (2*ks+j4)*256 + dt*64}"
def dma(i):
    vo = [VOK, VOK2, VOV, VOV2][i]
    srd = S_K if i < 2 else S_V
    return f"buffer_load_dwordx4 {v(vo)}, {s(srd,4)}, {s(sOFF)} offen lds"
def m0set(i):
    return [f"s_mov_b32 m0, {s(sWR)}", f"s_add_u32 m0, {s(sWR)}, {KP}",
            f"s_add_u32 m0, {s(sWR)}, {s(sVD)}", f"s_add_u32 m0, m0, {VP}"][i]

def sm_ops(g):
    S = SA if g == "A" else SB
    P = PA if g == "A" else PB
    L = LA if g == "A" else LB
    NM = NMA if g == "A" else NMB
    ops = {}
    for e in range(16):
        ops[("fma", e)] = (f"v_fma_f32 {v(S+e)}, {v(S+e)}, {s(sC)}, {v(NM)}", 4)
        ops[("exp", e)] = (f"v_exp_f32 {v(S+e)}, {v(S+e)}", 8)
        ops[("add", e)] = (f"v_add_f32 {v(L+(e&1))}, {v(L+(e&1))}, {v(S+e)}", 4)
    for p in range(8):
        ops[("cvt", p)] = (f"v_cvt_pk_bf16_f32 {v(P+p)}, {v(S+2*p)}, {v(S+2*p+1)}", 4)
    return ops

def steady_schedule(taken_branch=True):
    mem = {g: [] for g in range(32)}
    for f in range(8):
        for j4 in range(2):
            mem[(24 + 2*f + j4) % 32].append(("V", rdV(f, j4)))
    for st in range(8):
        mem[9 + st].append(("K", rdK(st)))
    for i in range(4):
        mem[17 + 2*i].append(("D", dma(i)))
    cap = {}
    for g in range(32):
        c = 24
        for k, _ in mem[g]: c -= 12 if k == "D" else 4
        cap[g] = c
    cap[8] = cfg.cap_bar
    if taken_branch: cap[31] = min(cap[31], cfg.cap_br)
    shadow = {g: [] for g in range(32)}
    ring = cfg.R * SL
    shadow[1].append(f"s_add_u32 {s(sRD)}, {s(sRD)}, {SL}")
    shadow[2].append(f"s_cmp_eq_u32 {s(sRD)}, {ring}")
    shadow[3].append(f"s_cmov_b32 {s(sRD)}, 0")
    shadow[6].append(f"s_waitcnt vmcnt({4*(cfg.R-3)})")
    shadow[7].append("s_waitcnt lgkmcnt(7)")
    shadow[8].append("s_barrier")
    shadow[11].append("s_waitcnt lgkmcnt(2)")
    shadow[15].append("s_waitcnt lgkmcnt(2)")
    shadow[16].append(m0set(0))
    shadow[18].append(m0set(1))
    shadow[19].append("s_waitcnt lgkmcnt(0)")
    shadow[20].append(m0set(2))
    shadow[22].append(m0set(3))
    shadow[24].append(f"s_sub_u32 {s(sOFF)}, {s(sOFF)}, {32*4096}")
    shadow[25].append(("SW", f"s_cmp_eq_u32 {s(sCNT)}, {cfg.R-2}"))
    shadow[26].append(("SW", f"s_cmov_b32 {s(sOFF)}, {s(sNOFF)}"))
    shadow[27].append(("SW", f"s_cmov_b32 {s(S_K+2)}, {s(sNEND)}"))
    shadow[28].append(("SW", f"s_cmov_b32 {s(S_V+2)}, {s(sNEND)}"))
    shadow[9].append(f"s_add_u32 {s(sWR)}, {s(sWR)}, {SL}")
    shadow[10].append(f"s_cmp_eq_u32 {s(sWR)}, {s(sWREND)}")
    shadow[12].append(f"s_cmov_b32 {s(sWR)}, {s(sWR0)}")
    valu = {g: [] for g in range(32)}
    used = {g: 0 for g in range(32)}
    fixed = {5: f"v_add_u32 {v(VKRD)}, {s(sRD)}, {v(VK0)}", 18: f"v_add_u32 {v(VVRD)}, {s(sRD)}, {v(VV0)}"}
    for g, t in fixed.items():
        valu[g].append(("x", t)); used[g] += 4
    def place(gname, start, deadline):
        ops = sm_ops(gname)
        done = {}
        pos = [0]
        g = start
        order = []
        remaining = set(ops)
        def ready(op, last):
            k, i = op
            def far(dep, dist):
                return dep in done and pos[0] - done[dep] > dist
            if k == "fma": return True
            if k == "exp": return far(("fma", i), 1)
            if k == "add": return far(("exp", i), 1) and (i < 2 or far(("add", i-2), 1))
            if k == "cvt": return far(("exp", 2*i), 1) and far(("exp", 2*i+1), 1)
        while remaining:
            gg = g % 32
            pos[0] += 1
            while True:
                free = cap[gg] - used[gg]
                if free <= 0: break
                cand = [op for op in remaining if ops[op][1] <= free and ready(op, None)]
                if not cand: break
                nf = sum(1 for o in done if o[0] == "fma"); ne = sum(1 for o in done if o[0] == "exp")
                nexp_here = sum(1 for t, x in valu[gg] if "v_exp" in x)
                def prio(op):
                    k, i = op
                    if k == "exp": return (0 if nexp_here == 0 else 3, i)
                    if k == "fma": return (1 if nf - ne < 2 else 4, i)
                    if k == "cvt": return (2, 2*i + 1.5)
                    if k == "add": return (2, i)
                op = min(cand, key=prio)
                valu[gg].append((gname + ("1" if g >= 32 or gname == "B" else "0"), ops[op][0]))
                used[gg] += ops[op][1]
                done[op] = pos[0]; pos[0] += 1
                remaining.discard(op)
                order.append((g, op))
            g += 1
            assert g < start + 40
        last = {op: gg for gg, op in order}
        assert max(last[("cvt", p)] for p in range(4)) < deadline - 4, (gname, last)
        assert max(gg for gg, op in order) < deadline, (gname, max(gg for gg, op in order), deadline)
        return order
    return mem, shadow, valu, used, cap, place

def build_steady(taken_branch=True):
    for reserve in range(0, 64, 4):
        mem, shadow, valu, used, cap, place = steady_schedule(taken_branch)
        res = {}
        r = reserve
        for g in (25, 26):
            x = min(r, cap[g] - used[g]); res[g] = x; r -= x
        if r > 0: break
        for g, x in res.items(): used[g] += x
        try:
            oa = place("A", 25, 43)
            for g, x in res.items(): used[g] -= x
            ob = place("B", 9, 27)
        except AssertionError as ex:
            continue
        return mem, shadow, valu, used, cap
    raise RuntimeError("no schedule")

def emit_body(e, kind, sched):
    mem, shadow, valu, used, cap = sched
    first, last = kind == "FIRST", kind == "LAST"
    for g in range(32):
        if g < 8: m = qk("B", g, c=(v(CM, 16) if (first and g == 0) else None))
        elif g < 16: m = pv("A", g - 8, first)
        elif g < 24: m = None if last else qk("A", g - 16)
        else: m = pv("B", g - 24, first)
        if last and g == 24: e("s_nop 1")
        if m: e(m)
        for x in shadow[g]:
            if isinstance(x, tuple):
                if kind == "LOOP": e(x[1])
            elif last and "vmcnt" in x: e(f"s_waitcnt vmcnt({4*(cfg.R-3)+16})")
            else: e(x)
        if kind == "LOOP" and g == 30: e(f"s_sub_u32 {s(sCNT)}, {s(sCNT)}, 1")
        for k, x in mem[g]:
            if last and k == "D": e("s_nop 0")
            e(x)
        if first and g == 9:
            emit_max(e, "B")
        prev = None
        for tag, x in valu[g]:
            if last and tag == "A0": continue
            e(x)
        if last and 16 <= g < 24: e("s_nop 0")

def emit_max(e, g):
    S = SA if g == "A" else SB
    NM = NMA if g == "A" else NMB
    MG = MGA if g == "A" else MGB
    t0, t1 = T0, T0 + 1
    e(f"v_max3_f32 {v(t0)}, {v(S)}, {v(S+1)}, {v(S+2)}")
    e(f"v_max3_f32 {v(t1)}, {v(S+3)}, {v(S+4)}, {v(S+5)}")
    e(f"v_max3_f32 {v(t0)}, {v(t0)}, {v(S+6)}, {v(S+7)}")
    e(f"v_max3_f32 {v(t1)}, {v(t1)}, {v(S+8)}, {v(S+9)}")
    e(f"v_max3_f32 {v(t0)}, {v(t0)}, {v(S+10)}, {v(S+11)}")
    e(f"v_max3_f32 {v(t1)}, {v(t1)}, {v(S+12)}, {v(S+13)}")
    e(f"v_max3_f32 {v(t0)}, {v(t0)}, {v(S+14)}, {v(S+15)}")
    e(f"v_max3_f32 {v(t0)}, {v(t0)}, {v(t1)}, {v(MG)}")
    e(f"v_mov_b32 {v(t1)}, {v(t0)}")
    e("s_nop 1")
    e(f"v_permlane32_swap_b32 {v(t0)}, {v(t1)}")
    e("s_nop 0")
    e(f"v_max_f32 {v(t0)}, {v(t0)}, {v(t1)}")
    e(f"v_mul_f32 {v(NM)}, {s(sNC)}, {v(t0)}")

def emit_epi(e, g):
    O = OA if g == "A" else OB
    L = LA if g == "A" else LB
    t0, t1 = T0 + 2, T0 + 3
    e(f"v_add_f32 {v(t0)}, {v(L)}, {v(L+1)}")
    e(f"v_mov_b32 {v(t1)}, {v(t0)}")
    e("s_nop 1")
    e(f"v_permlane32_swap_b32 {v(t0)}, {v(t1)}")
    e("s_nop 0")
    e(f"v_add_f32 {v(t0)}, {v(t0)}, {v(t1)}")
    e(f"v_cmp_nlt_f32 vcc, {v(t0)}, {v(T0+4)}")
    e(f"v_rcp_f32 {v(t0)}, {v(t0)}")
    e(f"s_add_u32 {s(sT)}, {s(sQOFF)}, {(0 if g == 'A' else 32)*4096}")
    e(f"s_add_u32 {s(sT+1)}, {s(sT)}, {16*4096}")
    e(f"s_or_b64 {s(sBAD,2)}, {s(sBAD,2)}, vcc")
    e(f"v_mov_b32 {v(t1)}, {v(t0)}")
    for dt in range(4):
        o = O + 16*dt
        p = PK + 8*dt
        for i in range(8):
            e(f"v_pk_mul_f32 {v(o+2*i,2)}, {v(o+2*i,2)}, {v(t0,2)}")
        for i in range(8):
            e(f"v_cvt_pk_bf16_f32 {v(p+i)}, {v(o+2*i)}, {v(o+2*i+1)}")
        e("s_nop 0")
        for i in range(4):
            e(f"v_permlane16_swap_b32 {v(p+i)}, {v(p+4+i)}")
        e("s_nop 0")
        e(f"buffer_store_dwordx4 {v(p,4)}, {v(VOO)}, {s(S_O,4)}, {s(sT)} offen offset:{64*dt}")
        e(f"buffer_store_dwordx4 {v(p+4,4)}, {v(VOO)}, {s(S_O,4)}, {s(sT+1)} offen offset:{64*dt}")

def stamp(e, idx):
    if not cfg.stamp: return
    e(f"s_memrealtime {s(sST,2)}")
    e(f"s_memtime {s(sST+2,2)}")
    e("s_waitcnt lgkmcnt(0)")
    e(f"v_writelane_b32 {v(221)}, {s(sST)}, {idx}")
    e(f"v_writelane_b32 {v(222)}, {s(sST+2)}, {idx}")

def param(seg):
    if seg is None: return 0
    sq, q0 = seg
    assert q0 % 32 == 0
    return CU[sq] | (LEN[sq] << 13) | ((q0 // 32) << 23) | (sq << 28)

def decode(e, p, base, end, qoff, n=None, tail=None, off=None):
    t = sT
    e(f"s_and_b32 {s(t)}, {s(p)}, 0x1fff")
    e(f"s_bfe_u32 {s(t+1)}, {s(p)}, {13 | (10 << 16)}")
    e(f"s_bfe_u32 {s(t+2)}, {s(p)}, {28 | (3 << 16)}")
    e(f"s_lshl_b32 {s(t+2)}, {s(t+2)}, 1")
    e(f"s_add_u32 {s(t+2)}, {s(t+2)}, {s(sHB)}")
    e(f"s_and_b32 {s(t+2)}, {s(t+2)}, 15")
    e(f"s_lshl_b32 {s(t+2)}, {s(t+2)}, 8")
    e(f"s_add_u32 {s(t+3)}, {s(t)}, {s(t+1)}")
    e(f"s_lshl_b32 {s(end)}, {s(t+3)}, 12")
    e(f"s_lshl_b32 {s(t)}, {s(t)}, 12")
    e(f"s_add_u32 {s(base)}, {s(t)}, {s(t+2)}")
    e(f"s_bfe_u32 {s(t+2)}, {s(p)}, {23 | (5 << 16)}")
    e(f"s_lshl_b32 {s(t+3)}, {s(sWAVE)}, 1")
    e(f"s_add_u32 {s(t+2)}, {s(t+2)}, {s(t+3)}")
    e(f"s_lshl_b32 {s(t+2)}, {s(t+2)}, 17")
    e(f"s_add_u32 {s(qoff)}, {s(base)}, {s(t+2)}")
    e(f"s_sub_u32 {s(t+2)}, {s(t+1)}, 1")
    e(f"s_lshr_b32 {s(t+2)}, {s(t+2)}, 5")
    if n is not None: e(f"s_add_u32 {s(n)}, {s(t+2)}, 1")
    if tail is not None:
        e(f"s_lshl_b32 {s(t+3)}, {s(t+2)}, 5")
        e(f"s_sub_u32 {s(tail)}, {s(t+1)}, {s(t+3)}")
    if off is not None:
        e(f"s_lshl_b32 {s(t+2)}, {s(t+2)}, 17")
        e(f"s_add_u32 {s(off)}, {s(base)}, {s(t+2)}")

def emit_qdma(e, qoff):
    e(f"s_mov_b32 m0, {s(sQL)}")
    e(f"s_mov_b32 {s(sT+4)}, {s(qoff)}")
    for g in range(2):
        for j in range(8):
            e(f"buffer_load_dwordx4 {v(VOQ)}, {s(S_Q,4)}, {s(sT+4)} offen lds")
            if not (g == 1 and j == 7):
                e(f"s_add_u32 m0, m0, {KP}")
                e(f"s_add_u32 {s(sT+4)}, {s(sT+4)}, {4096 if j < 7 else 25*4096}")

def emit_tile_dma(e):
    for i in range(4):
        e(m0set(i)); e("s_nop 0"); e(dma(i))
    e(f"s_sub_u32 {s(sOFF)}, {s(sOFF)}, {32*4096}")

def generate():
    ring, qbase, flbase, ldsz = lds_layout()
    roles = cfg.roles
    e = E()
    c = math.log2(math.e) / math.sqrt(128.0)
    e(f"; @launch grid=(256,1,1) block=(256,1,1) lds={ldsz}")
    e('.amdgcn_target "amdgcn-amd-amdhsa--gfx950"')
    e(".text")
    e(f".globl {NAME}_kernel")
    e(".p2align 8")
    e(f".type {NAME}_kernel,@function")
    e(f"{NAME}_kernel:")
    e(f"s_load_dwordx4 {s(40,4)}, s[0:1], 0")
    e(f"s_load_dwordx2 {s(S_V,2)}, s[0:1], 16")
    e(f"s_load_dwordx2 {s(S_O,2)}, s[0:1], 32")
    if cfg.stamp:
        e(f"s_load_dwordx2 {s(S_W,2)}, s[0:1], 48")
        e(f"s_memrealtime {s(72,2)}")
        e(f"s_memtime {s(74,2)}")
    e("s_cmp_ge_u32 s2, 256")
    e("s_cbranch_scc1 L_end")
    e("v_lshrrev_b32 v1, 6, v0")
    e("v_and_b32 v0, 63, v0")
    e(f"v_readfirstlane_b32 {s(sWAVE)}, v1")
    e(f"s_and_b32 {s(sHB)}, s2, 7")
    e(f"s_lshl_b32 {s(sHB)}, {s(sHB)}, 1")
    e(f"s_bfe_u32 s3, s2, {3 | (1 << 16)}")
    e(f"s_add_u32 {s(sHB)}, {s(sHB)}, s3")
    e(f"s_lshr_b32 s3, s2, 4")
    e(f"s_mov_b32 {s(sP1S)}, {param(roles[0][0]):#x}")
    e(f"s_mov_b32 {s(sP2S)}, {param(roles[0][1]):#x}")
    for r in range(1, 16):
        e(f"s_cmp_eq_u32 s3, {r}")
        e(f"s_cmov_b32 {s(sP1S)}, {param(roles[r][0]):#x}")
        if param(roles[r][1]) != param(roles[0][1]):
            e(f"s_cmov_b32 {s(sP2S)}, {param(roles[r][1]):#x}")
    e("v_lshrrev_b32 v2, 4, v0")
    e("v_and_b32 v3, 15, v0")
    e("v_and_b32 v4, 1, v2")
    e("v_xor_b32 v4, v3, v4")
    e("v_lshlrev_b32 v5, 15, v2")
    e(f"v_lshl_add_u32 {v(VOQ)}, v4, 4, v5")
    e(f"v_lshl_add_u32 v6, v3, 4, v5")
    e(f"s_lshl_b32 s3, {s(sWAVE)}, 13")
    e(f"v_add_u32 {v(VOK)}, s3, {v(VOQ)}")
    e(f"v_add_u32 {v(VOV)}, s3, v6")
    e(f"v_add_u32 {v(VOK2)}, 4096, {v(VOK)}")
    e(f"v_add_u32 {v(VOV2)}, 4096, {v(VOV)}")
    e(f"v_lshlrev_b32 v6, 12, v3")
    e(f"v_lshl_add_u32 {v(VOO)}, v2, 4, v6")
    e("v_and_b32 v3, 7, v0")
    e(f"v_mul_u32_u24 v3, {KP}, v3")
    e("v_bfe_u32 v4, v0, 3, 2")
    e("v_lshl_add_u32 v3, v4, 8, v3")
    e("v_lshrrev_b32 v5, 5, v0")
    e("v_xor_b32 v4, v4, v5")
    e("v_and_b32 v4, 1, v4")
    e(f"v_lshl_add_u32 {v(VK0)}, v4, 4, v3")
    e(f"v_lshlrev_b32 {v(VH4)}, 2, v5")
    e("v_bfe_u32 v3, v0, 2, 2")
    e(f"v_add_u32 v3, v3, {v(VH4)}")
    e(f"v_mul_u32_u24 v3, {VP}, v3")
    e("v_and_b32 v4, 1, v0")
    e("v_lshl_add_u32 v3, v4, 5, v3")
    e("v_bfe_u32 v4, v0, 4, 1")
    e("v_lshl_add_u32 v3, v4, 4, v3")
    e("v_bfe_u32 v4, v0, 1, 1")
    e(f"v_lshl_add_u32 {v(VV0)}, v4, 3, v3")
    e("v_and_b32 v3, 31, v0")
    e("v_lshlrev_b32 v3, 12, v3")
    e(f"v_lshl_add_u32 {v(VMX)}, v5, 4, v3")
    e(f"s_mul_i32 {s(sWR0)}, {s(sWAVE)}, {2*KP}")
    e(f"s_add_u32 {s(sWREND)}, {s(sWR0)}, {ring}")
    e(f"s_lshl_b32 {s(sVD)}, {s(sWAVE)}, 6")
    e(f"s_add_u32 {s(sVD)}, {s(sVD)}, {KT}")
    e(f"s_mul_i32 {s(sQL)}, {s(sWAVE)}, {16*KP}")
    e(f"s_add_u32 {s(sQL)}, {s(sQL)}, {qbase}")
    e(f"v_add_u32 {v(VQRD)}, {s(sQL)}, {v(VK0)}")
    e(f"s_mov_b32 {s(sC)}, {fbits(c):#x}")
    e(f"s_mov_b32 {s(sNC)}, {fbits(-c):#x}")
    e(f"s_mov_b32 {s(sEXACT)}, 0")
    e(f"s_mov_b64 {s(sBAD,2)}, 0")
    e(f"v_mov_b32 {v(T0+4)}, {fbits(0.5 if cfg.force_exact else 2.0**30):#x}")
    for r in (S_Q, S_K, S_V, S_O): e(f"s_mov_b32 {s(r+3)}, 0x20000")
    e("s_waitcnt lgkmcnt(0)")
    e(f"s_mov_b64 {s(S_Q,2)}, {s(40,2)}")
    e(f"s_mov_b64 {s(S_K,2)}, {s(42,2)}")
    if cfg.stamp:
        e(f"s_mov_b32 {s(S_W+2)}, 0x10000000")
        e(f"s_mov_b32 {s(S_W+3)}, 0x20000")
        e(f"v_mov_b32 v221, 0")
        e(f"v_mov_b32 v222, 0")
        e(f"v_writelane_b32 {v(221)}, {s(72)}, 0")
        e(f"v_writelane_b32 {v(222)}, {s(74)}, 0")
    e("L_restart:")
    e(f"s_mov_b32 {s(sP1)}, {s(sP1S)}")
    e(f"s_mov_b32 {s(sP2)}, {s(sP2S)}")
    decode(e, sP1, sBASE, S_K+2, sQOFF, off=sOFF)
    e(f"s_mov_b32 {s(S_V+2)}, {s(S_K+2)}")
    e(f"s_mov_b32 {s(S_Q+2)}, {s(S_K+2)}")
    e(f"s_mov_b32 {s(sWR)}, {s(sWR0)}")
    stamp(e, 1)
    emit_tile_dma(e)
    emit_qdma(e, sQOFF)
    for i in range(cfg.R - 2):
        e(f"s_add_u32 {s(sWR)}, {s(sWR)}, {SL}")
        emit_tile_dma(e)
    e(f"s_mov_b32 {s(sRD)}, 0")
    e(f"v_mov_b32 {v(VKRD)}, {v(VK0)}")
    e(f"v_mov_b32 {v(VVRD)}, {v(VV0)}")
    stamp(e, 2)
    e(f"s_waitcnt vmcnt({16 + 4*(cfg.R-2)})")
    e("s_barrier")
    for st in range(8): e(rdK(st))
    for f in range(4):
        e(rdV(f, 0)); e(rdV(f, 1))
    e(f"s_waitcnt vmcnt({4*(cfg.R-2)})")
    stamp(e, 3)
    e("L_seg:")
    for g in range(2):
        for st in range(8):
            e(f"ds_read_b128 {a(QA+32*g+4*st,4)}, {v(VQRD)} offset:{g*8*KP + st*32}")
    decode(e, sP1, sBASE, S_O+2, sQOFF, n=sN, tail=sTAIL)
    e(f"s_mov_b32 {s(sNOFF)}, 0x40000000")
    e(f"s_mov_b32 {s(sNEND)}, 0")
    e(f"s_mov_b32 {s(sNQOFF)}, 0")
    e(f"s_cmp_eq_u32 {s(sP2)}, 0")
    e("s_cbranch_scc1 L_nonext")
    decode(e, sP2, sT+5, sNEND, sNQOFF, off=sNOFF)
    e("L_nonext:")
    e(f"s_sub_u32 {s(sCNT)}, {s(sN)}, 3")
    e(f"s_lshl_b64 {s(sT,2)}, -1, {s(sTAIL)}")
    e(f"v_lshrrev_b32 {v(T0)}, {v(VH4)}, {s(sT)}")
    for r in range(16):
        e(f"v_bfe_i32 {v(CM+r)}, {v(T0)}, {8*(r>>2) + (r&3)}, 1")
    for r in range(16):
        e(f"v_and_b32 {v(CM+r)}, 0xff800000, {v(CM+r)}")
    for r in range(4): e(f"v_mov_b32 {v(LA+r)}, 0")
    e(f"v_mov_b32 {v(MGA)}, 0xff800000")
    e(f"v_mov_b32 {v(MGB)}, 0xff800000")
    e(f"s_cmp_lg_u32 {s(sEXACT)}, 0")
    e("s_waitcnt lgkmcnt(0)")
    e("s_cbranch_scc1 L_maxpass")
    e("L_maxdone:")
    stamp(e, 4)
    sched = build_steady(True)
    mem, shadow, valu, used, cap = sched
    for st in range(8): e(qk("A", st, c=(v(CM, 16) if st == 0 else None)))
    e("s_nop 11")
    emit_max(e, "A")
    for g in range(24, 32):
        for tag, x in valu[g]:
            if tag == "A0": e(x)
        e("s_nop 0")
    emit_body(e, "FIRST", sched)
    stamp(e, 5)
    e(".p2align 6")
    e("L_loop:")
    emit_body(e, "LOOP", sched)
    e("s_cbranch_scc0 L_loop")
    stamp(e, 6)
    e(f"s_mov_b32 {s(S_Q+2)}, {s(sNEND)}")
    e(f"s_cmp_eq_u32 {s(sP2)}, 0")
    e("s_cbranch_scc1 L_noq")
    emit_qdma(e, sNQOFF)
    e("L_noq:")
    emit_body(e, "LAST", sched)
    stamp(e, 7)
    emit_epi(e, "A")
    emit_epi(e, "B")
    stamp(e, 8)
    e(f"s_cmp_eq_u32 {s(sP2)}, 0")
    e("s_cbranch_scc1 L_fin")
    e(f"s_mov_b32 {s(sP1)}, {s(sP2)}")
    e(f"s_mov_b32 {s(sP2)}, 0")
    e("s_waitcnt vmcnt(16)")
    if cfg.stamp:
        for i in range(4, 9):
            e(f"v_readlane_b32 {s(sST)}, v221, {i}")
            e(f"v_readlane_b32 {s(sST+1)}, v222, {i}")
            e("s_nop 3")
            e(f"v_writelane_b32 v221, {s(sST)}, {i+8}")
            e(f"v_writelane_b32 v222, {s(sST+1)}, {i+8}")
    e("s_branch L_seg")
    e("L_fin:")
    e(f"s_cmp_lg_u64 {s(sBAD,2)}, 0")
    e(f"s_cselect_b32 {s(sT)}, 1, 0")
    e(f"s_lshl_b32 {s(sT+1)}, {s(sWAVE)}, 2")
    e(f"s_add_u32 {s(sT+1)}, {s(sT+1)}, {flbase}")
    e(f"v_mov_b32 {v(T0)}, {s(sT)}")
    e(f"v_mov_b32 {v(T0+1)}, {s(sT+1)}")
    e(f"ds_write_b32 {v(T0+1)}, {v(T0)}")
    e(f"v_mov_b32 {v(T0+1)}, {flbase}")
    e("s_waitcnt lgkmcnt(0)")
    e("s_barrier")
    e(f"ds_read_b128 {v(PA,4)}, {v(T0+1)}")
    e("s_waitcnt lgkmcnt(0)")
    e(f"v_or3_b32 {v(T0)}, {v(PA)}, {v(PA+1)}, {v(PA+2)}")
    e(f"v_or_b32 {v(T0)}, {v(T0)}, {v(PA+3)}")
    e("s_nop 0")
    e(f"v_readfirstlane_b32 {s(sT)}, {v(T0)}")
    e("s_nop 3")
    e(f"s_andn2_b32 {s(sT)}, {s(sT)}, {s(sEXACT)}")
    e("s_cbranch_scc1 L_redo")
    if cfg.stamp:
        e("s_waitcnt vmcnt(0)")
        stamp(e, 9)
        e(f"s_lshl_b32 {s(sT)}, s2, 2")
        e(f"s_add_u32 {s(sT)}, {s(sT)}, {s(sWAVE)}")
        e(f"s_lshl_b32 {s(sT)}, {s(sT)}, 9")
        e(f"v_mbcnt_lo_u32_b32 v0, -1, 0")
        e(f"v_mbcnt_hi_u32_b32 v0, -1, v0")
        e(f"v_lshlrev_b32 v0, 2, v0")
        e(f"buffer_store_dword v221, v0, {s(S_W,4)}, {s(sT)} offen")
        e(f"buffer_store_dword v222, v0, {s(S_W,4)}, {s(sT)} offen offset:256")
    e("L_end:")
    e("s_endpgm")
    e("L_redo:")
    e(f"s_mov_b32 {s(sEXACT)}, 1")
    e("s_waitcnt vmcnt(0)")
    e("s_barrier")
    e("s_branch L_restart")
    e("L_maxpass:")
    e(f"s_mov_b32 {s(sT)}, {s(sBASE)}")
    e(f"s_sub_u32 {s(sT+1)}, {s(sN)}, 1")
    e("L_maxloop:")
    for st in range(8):
        e(f"buffer_load_dwordx4 {a(KX+4*st,4)}, {v(VMX)}, {s(S_K,4)}, {s(sT)} offen offset:{32*st}")
    e("s_waitcnt vmcnt(0)")
    for g, S, Q in (("A", SA, QA), ("B", SB, QB)):
        for st in range(8):
            e(f"v_mfma_f32_32x32x16_bf16 {v(S,16)}, {a(KX+4*st,4)}, {a(Q+4*st,4)}, {v(S,16) if st else '0'}")
    e("s_nop 15")
    for i in range(8):
        e(f"v_max3_f32 {v(MGA)}, {v(MGA)}, {v(SA+2*i)}, {v(SA+2*i+1)}")
        e(f"v_max3_f32 {v(MGB)}, {v(MGB)}, {v(SB+2*i)}, {v(SB+2*i+1)}")
    e(f"s_add_u32 {s(sT)}, {s(sT)}, {32*4096}")
    e(f"s_sub_u32 {s(sT+1)}, {s(sT+1)}, 1")
    e(f"s_cmp_lg_u32 {s(sT+1)}, 0")
    e("s_cbranch_scc1 L_maxloop")
    e("s_branch L_maxdone")
    e('.section .rodata,"a"')
    e(".p2align 6")
    e(f".amdhsa_kernel {NAME}_kernel")
    e(".amdhsa_next_free_vgpr 416")
    e(".amdhsa_next_free_sgpr 102")
    e(".amdhsa_accum_offset 256")
    e(".amdhsa_group_segment_fixed_size 0")
    e(".amdhsa_kernarg_size 56")
    e(".amdhsa_user_sgpr_count 2")
    e(".amdhsa_user_sgpr_kernarg_segment_ptr 1")
    e(".amdhsa_system_sgpr_workgroup_id_x 1")
    e(".end_amdhsa_kernel")
    return e.text(), sched

ROLES_V1 = [
    ((7, 0), (7, 256)), ((4, 0), (2, 0)), ((3, 0), (5, 0)), ((3, 256), (5, 256)),
    ((4, 256), (1, 0)), ((4, 512), (1, 256)), ((7, 512), (2, 256)),
    ((0, 0), None), ((0, 256), None), ((0, 512), None), ((0, 768), None),
    ((6, 0), None), ((6, 256), None), ((6, 512), None), ((6, 768), None), ((3, 512), None),
]

if __name__ == "__main__":
    import argparse
    ap = argparse.ArgumentParser()
    ap.add_argument("-o", default="cdna_kernels/" + NAME + ".s")
    ap.add_argument("--stamp", action="store_true")
    ap.add_argument("--force-exact", action="store_true")
    ap.add_argument("--cap-bar", type=int, default=0)
    ap.add_argument("--cap-br", type=int, default=8)
    ap.add_argument("-v", action="store_true")
    args = ap.parse_args()
    cfg.stamp = args.stamp; cfg.force_exact = args.force_exact
    cfg.cap_bar = args.cap_bar; cfg.cap_br = args.cap_br
    cfg.roles = ROLES_V1
    txt, sched = generate()
    open(args.o, "w").write(txt)
    if args.v:
        mem, shadow, valu, used, cap = sched
        for g in range(32):
            print(g, cap[g], used[g], [x if isinstance(x, str) else x[1] for x in shadow[g]], [k for k, _ in mem[g]], [t + ":" + x.split()[0][2:5] + x.split()[1].rstrip(",") for t, x in valu[g]])
```

```python
import re

def v(b, n=1): return f"v{b}" if n == 1 else f"v[{b}:{b+n-1}]"
def a(b, n=1): return f"a{b}" if n == 1 else f"a[{b}:{b+n-1}]"
def s(b, n=1): return f"s{b}" if n == 1 else f"s[{b}:{b+n-1}]"

_R = re.compile(r"^-?\|?([vas])(?:(\d+)|\[(\d+):(\d+)\])\|?$")
def regs(op):
    op = op.strip()
    if op in ("vcc", "m0", "exec"): return {op}
    m = _R.match(op)
    if not m: return set()
    p = m.group(1)
    if m.group(2) is not None: return {p + m.group(2)}
    return {p + str(i) for i in range(int(m.group(3)), int(m.group(4)) + 1)}

TRANS = ("v_exp_f32", "v_rcp_f32", "v_log_f32", "v_rsq_f32", "v_sqrt_f32")
class I:
    def __init__(self, text):
        self.text = text
        t = text.split(";")[0].strip()
        self.op = t.split()[0] if t else ""
        rest = t[len(self.op):]
        ops = [x.strip() for x in rest.split(",")] if rest.strip() else []
        ops = [x.split()[0] if x else x for x in ops]
        self.ops = ops
        op = self.op
        self.kind = "other"; self.rd = set(); self.wr = set(); self.passes = 0
        self.srcc = set(); self.srcab = set()
        R = [regs(x) for x in ops]
        U = lambda l: set().union(*l) if l else set()
        if op.endswith(":") or op.startswith(".") or op == "":
            self.kind = "label" if op.endswith(":") else "dir"
        elif op.startswith("v_mfma") or op.startswith("v_smfmac"):
            self.kind = "mfma"
            self.wr = R[0]; self.srcab = R[1] | R[2]
            if op.startswith("v_smfmac"):
                self.srcc = R[0]; self.srcab |= R[3]
            else: self.srcc = R[3]
            self.rd = self.srcab | self.srcc
            self.passes = 2 if "4x4x4" in op else (8 if "32x32" in op else 4)
        elif op.startswith("ds_read"):
            self.kind = "ds"; self.wr = R[0]; self.rd = R[1]
        elif op.startswith("ds_write"):
            self.kind = "ds"; self.rd = U(R)
        elif op.startswith("buffer_load"):
            self.kind = "vmem"
            if " lds" in t: self.rd = U(R) | {"m0"}; self.dma = True
            else: self.wr = R[0]; self.rd = U(R[1:])
        elif op.startswith("buffer_store"):
            self.kind = "vmem"; self.rd = U(R); self.sdata = R[0]
        elif op.startswith("v_permlane"):
            self.kind = "valu"; self.wr = R[0] | R[1]; self.rd = R[0] | R[1]
        elif op.startswith("v_cmp"):
            self.kind = "valu"; self.wr = R[0]; self.rd = U(R[1:])
        elif op.startswith("v_"):
            self.kind = "valu"; self.wr = R[0]; self.rd = U(R[1:])
            if op.startswith(("v_fmac", "v_writelane", "v_dot2c")): self.rd |= R[0]
        elif op == "s_nop":
            self.kind = "nop"; self.n = int(ops[0]) + 1
        elif op == "s_waitcnt": self.kind = "wait"
        elif op.startswith(("s_cbranch", "s_branch", "s_setpc", "s_endpgm")): self.kind = "branch"
        elif op.startswith(("s_load", "s_mem")):
            self.kind = "smem"; self.wr = R[0]
        elif op.startswith("s_"):
            self.kind = "salu"
            if op.startswith("s_cmp"): self.rd = U(R)
            elif op == "s_barrier": pass
            else:
                self.wr = R[0]; self.rd = U(R[1:])
        self.trans = op in TRANS
    def lgkm(self):
        m = re.search(r"lgkmcnt\((\d+)\)", self.text)
        return int(m.group(1)) if m else None

def insert_lgkm(lines, pending=(), auto=True, placeholders=True):
    ins = [x if x == "WAITL" else I(x) for x in lines]
    q = [set(p) for p in pending]
    out = []
    def need(instr, q):
        n = None
        for k, w in enumerate(q):
            if w & (instr.rd | instr.wr): n = len(q) - 1 - k
        return n
    for idx, x in enumerate(ins):
        if x == "WAITL":
            n = None
            for y in ins[idx+1:]:
                if y == "WAITL": break
                m = need(y, q)
                if m is not None: n = m if n is None else min(n, m)
            if n is not None:
                n = min(n, 15)
                out.append(f"s_waitcnt lgkmcnt({n})")
                q = q[len(q)-n:] if n else []
            continue
        if x.kind == "wait" and x.lgkm() is not None:
            n = x.lgkm(); q = q[len(q)-n:] if n and n < len(q) else ([] if n == 0 else q)
        m = need(x, q)
        if x.kind == "ds" and m is not None:
            m = None
            for k, w in enumerate(q):
                if w & x.rd: m = len(q) - 1 - k
        if m is not None:
            assert auto, f"missing lgkm wait before {x.text}"
            m = min(m, 15)
            out.append(f"s_waitcnt lgkmcnt({m})")
            q = q[len(q)-m:] if m else []
        out.append(x.text)
        if x.kind == "ds": q.append(set(x.wr))
        if x.kind == "smem": q.append(set(x.wr))
    return out, q

XDL_VALU = {2: 5, 4: 8, 8: 12}
XDL_AB = {2: 5, 4: 8, 8: 12}
XDL_COVL = {2: 4, 4: 6, 8: 10}
XDL_WARC = {2: 1, 4: 3, 8: 7}
def pad_hazards(lines, prev=(), auto=True):
    hist = []
    out = []
    st = {"slot": 0, "t": 0, "mfree": 0}
    def issue(x):
        t = st["t"]
        if x.kind == "mfma":
            t = max(t, st["mfree"]); st["mfree"] = t + 4 * x.passes
        hist.append((x, st["slot"], t))
        n = x.n if x.kind == "nop" else 1
        st["slot"] += n; st["t"] = t + 4 * n
    def required(x):
        need = 0
        tx = max(st["t"], st["mfree"]) if x.kind == "mfma" else st["t"]
        for y, sl, ty in hist[-40:]:
            d = st["slot"] - sl - 1
            dt = (tx - ty) // 4 - 1
            r = 0; timed = False
            vw = {z for z in y.wr if z[0] in "va" and z != "vcc"}
            if y.kind == "valu":
                if x.kind == "mfma" and vw & x.rd: r = 2
                if y.trans and x.kind == "valu" and not x.trans and vw & (x.rd | x.wr): r = max(r, 1)
                if y.trans and x.kind in ("ds", "vmem") and vw & x.rd: r = max(r, 1)
                if x.op.startswith("v_permlane") and vw & x.rd: r = max(r, 2)
                if x.op.startswith(("v_readfirstlane", "v_readlane")) and vw & x.rd: r = max(r, 1)
                sw = {z for z in y.wr if z[0] == "s" or z == "vcc"}
                if sw & x.rd:
                    if x.kind == "vmem": r = max(r, 5)
                    if x.kind == "valu": r = max(r, 4 if "lane" in x.op else 2)
                    if x.kind == "salu": r = max(r, 1)
            if y.kind == "mfma":
                timed = True
                if x.kind == "mfma":
                    if y.wr & x.srcab: r = max(r, XDL_AB[y.passes])
                    if y.wr & x.srcc:
                        if y.wr == x.srcc and y.passes == x.passes: r = max(r, 2 if y.passes == 2 else 0)
                        else: r = max(r, XDL_COVL[y.passes])
                    elif y.wr & x.wr and y.passes != x.passes: r = max(r, XDL_COVL[y.passes])
                elif x.kind in ("valu", "ds", "vmem"):
                    if y.wr & (x.rd | x.wr): r = max(r, XDL_VALU[y.passes])
                    if x.kind == "valu" and y.srcc & x.wr: r = max(r, XDL_WARC[y.passes])
            if y.kind == "salu" and "m0" in y.wr and "m0" in x.rd and x.kind == "vmem": r = max(r, 1)
            if y.kind == "vmem" and getattr(y, "sdata", None) and y.sdata & x.wr: r = max(r, 2)
            have = max(d, dt) if timed else d
            need = max(need, r - have)
        return need
    for l in prev:
        x = I(l)
        if x.kind not in ("label", "dir"): issue(x)
    for l in lines:
        x = I(l)
        if x.kind in ("label", "dir"):
            out.append(l); continue
        n = required(x)
        while n > 0:
            assert auto, f"hazard before {l} ({n})"
            k = min(n, 16)
            nop = f"s_nop {k-1}"
            out.append(nop); issue(I(nop))
            n = required(x)
        out.append(l); issue(x)
    return out

def estimate(lines):
    t = 0; mfree = 0; vfree = 0; dsok = 0; mok = 0
    for l in lines:
        x = I(l)
        if x.kind in ("label", "dir"): continue
        if x.kind == "mfma":
            t = max(t, mfree, vfree, mok); mfree = t + 4*x.passes
            ic = len(x.srcab) if not x.op.startswith("v_smfmac") else 12
            ic = max(4, min(12, ic))
            vfree = t + ic; dsok = t + ic; t += 4
        elif x.kind == "valu":
            t = max(t, vfree)
            if x.op.startswith(("v_pk_", "v_dot")): t = max(t, mfree + 12)
            c = 8 if (x.trans or "permlane" in x.op) else 4
            t += c; vfree = t; dsok = t + 8
        elif x.kind == "ds":
            t = max(t, dsok); t += 4; vfree = max(vfree, t)
        elif x.kind == "vmem":
            t = max(t, dsok); vfree = t + 12; mok = t + 16; t += 8; dsok = t
        elif x.kind == "nop": t += 4*x.n
        else: t += 4
    return max(t, mfree)
```

```python
import sys, struct, math
from asmlib import *

CU = [0, 992, 1451, 1933, 2583, 3189, 3578, 4512, 5082]
LEN = [CU[i+1]-CU[i] for i in range(8)]
NAME = "standalone__varlen_attn_packed__ragged"
TOTB = 5082 * 4096

class Cfg:
    R = 5
    stamp = False
    force_exact = False
    probe = None
    roles = None
    verbose = False
    dma_gaps = {4: [9, 13, 19, 23], 3: [9, 12, 36, 38]}
    qdma_gaps = {4: [27, 30], 3: [19, 21]}
    unroll = 1
cfg = Cfg()

O0, Q0 = 0, 128
S0, P0 = 192, 208
S2, P2 = 96, 104
C0 = 216
VKRD, VVRD, VK0, VV0 = 232, 233, 234, 235
VO1, VO2, VOQ, VOQ2 = 236, 237, 238, 239
VQRD, VOW, VOR, VOO = 240, 241, 242, 243
VCHK = 244
T0 = 246
ST0, ST1 = 254, 255
KF, VF, LACC, ONES, ONM1, ONM2, AHI, ALO, KX = 0, 32, 64, 80, 84, 88, 92, 94, 96
NAGPR = 128

S_Q, S_K, S_V, S_O = 4, 8, 12, 16
sWAVE, sHB = 20, 21
sOFF, sINC, sRD, sM0N, sWP, sCNT = 22, 23, 24, 25, 26, 27
sNOFF, sNINC, sNVEND = 28, 29, 30
sN, sQOFF, sBASE, sTINC, sW = 31, 32, 33, 34, 35
sN2, sQOFF2, sEND2, sW2 = 36, 37, 38, 39
sT = 40
sQL, sQM, sQS, sQSTOP = 50, 51, 52, 53
sEXACT, sP1, sP2, sSEG = 54, 55, 56, 57
sST = 60
S_W = 68

WP = 4160; SL = 4 * WP
KO1, VO_0, VO_1 = 1056, 2080, 3136
QP = 1088; QT = 4 * QP; QW = 4 * QT
def lds_layout():
    ring = cfg.R * SL
    fl = ring + 4 * QW
    return ring, fl, fl + 64
def fbits(x): return struct.unpack("<I", struct.pack("<f", x))[0]
def bf16(x):
    b = fbits(x); b = (b + 0x7fff + ((b >> 16) & 1)) >> 16
    return b, struct.unpack("<f", struct.pack("<I", b << 16))[0]
LO_BITS, HI_BITS = fbits(2.0**-16), fbits(2.0**30)

def SB(j, w): return S2 if (w % 2 and j == w-1) else S0 + 8*(j & 1)
def PB(j, w): return P2 if (w % 2 and j == w-1) else P0 + 4*(j & 1)
def m16(d, a_, b_, c_): return f"v_mfma_f32_16x16x32_bf16 {d}, {a_}, {b_}, {c_}"
def qk(j, x, w):
    kt, st = x // 4, x % 4
    d = v(SB(j, w) + 4*kt, 4)
    return m16(d, a(KF + 4*x, 4), v(Q0 + 16*j + 4*st, 4), d if st else v(C0 + 4*j, 4))
def pv(j, dt, w, first=False):
    d = v(O0 + 32*j + 4*dt, 4)
    return m16(d, a(VF + 4*dt, 4), v(PB(j, w), 4), "0" if first else d)
def rs(j, w, mask=None):
    d = a(LACC + 4*j, 4)
    return m16(d, a(mask if mask else ONES, 4), v(PB(j, w), 4), "0" if mask else d)
def rdK(x): return f"ds_read_b128 {a(KF+4*x,4)}, {v(VKRD)} offset:{(x//4)*512 + (x%4)*64}"
def rdV(dt, j4): return f"ds_read_b64_tr_b16 {a(VF+4*dt+2*j4,2)}, {v(VVRD)} offset:{VO_0 + j4*512 + dt*32}"
def rdQ(j): return [f"ds_read_b128 {v(Q0+16*j+4*st,4)}, {v(VQRD)} offset:{j*QT + st*64}" for st in range(4)]
def dma(i):
    vo = [VO1, VO2, VO1, VO2][i]; srd = S_K if i < 2 else S_V
    return f"buffer_load_dwordx4 {v(vo)}, {s(srd,4)}, {s(sOFF)} offen offset:{[0, KO1, VO_0, VO_1][i]} lds"
def qdma(i):
    return f"buffer_load_dwordx4 {v([VOQ, VOQ2][i])}, {s(S_Q,4)}, {s(sQS)} offen offset:{i*QP} lds"

class Gap:
    def __init__(self, key): self.key = key; self.sh = []; self.mem = []; self.va = []; self.cap = 8; self.used = 0

def table(w, withq=False):
    G = []; idx = {}
    for b in range(w):
        j = (b + 1) % w
        for x in range(8): idx[("QK", j, x)] = len(G); G.append(Gap(("QK", j, x)))
        for dt in range(8): idx[("PV", b, dt)] = len(G); G.append(Gap(("PV", b, dt)))
        idx[("RS", b)] = len(G); G.append(Gap(("RS", b)))
    n = len(G)
    g0 = idx[("PV", w-1, 0)]
    for dt in range(8):
        g = g0 + 2*dt + (1 if dt >= 4 else 0)
        for j4 in range(2): G[g % n].mem.append((("V", g >= n), rdV(dt, j4)))
        G[g % n].cap -= 8
    k0 = idx[("QK", w-1, 0)]
    for x in range(8):
        g = k0 + 2*x + 1
        G[g].mem.append((("K",), rdK(x))); G[g].cap -= 4
    bar = k0 - 1
    dg = cfg.dma_gaps[w]
    nb = sum(1 for g in dg if g < bar - 1)
    G[bar].sh.append((("bar",), "s_barrier")); G[bar].cap = 0
    G[bar-1].sh.append((("vm",), f"s_waitcnt vmcnt({4*(cfg.R-3) + nb})"))
    for i, g in enumerate(dg):
        assert G[g].cap == 8, (w, g)
        G[g].mem.append((("D", i), dma(i))); G[g].cap = 4
    G[n-1].cap = 0
    busy = {bar, bar-1}
    def shadow(items, lo, hi, tag):
        g = lo
        for t in items:
            while g in busy: g += 1
            assert g <= hi, (w, items, lo, hi)
            G[g].sh.append((tag, t)); busy.add(g); g += 1
        return g
    q0 = idx[("QK", 0, 0)]; p0 = idx[("PV", 0, 0)]
    for g in (q0-1, q0+3, q0+5, p0-1, p0+3, p0+5):
        G[g].sh.append((("wl",), "WAITL")); busy.add(g)
    qg = cfg.qdma_gaps[w]
    ring = cfg.R * SL
    shadow([f"s_mov_b32 m0, {s(sM0N)}"], 0, dg[0]-1, ("m0",))
    if withq:
        for i, g in enumerate(qg):
            assert G[g].cap == 8, (w, g)
            G[g].mem.append((("Q", i), qdma(i))); G[g].cap = 4
        ev = sorted([(g, "D") for g in dg] + [(g, "Q") for g in qg])
        for (ga, ka), (gb, kb) in zip(ev, ev[1:]):
            if ka != kb:
                shadow([f"s_mov_b32 m0, {s(sQM if kb == 'Q' else sT+8)}"], ga+1, gb-1, ("m0",))
        shadow([f"s_mov_b32 {s(sT+8)}, {s(sM0N)}"], 0, dg[0], ("m0",))
    e1 = shadow([f"s_add_u32 {s(sM0N)}, {s(sRD)}, {s(sWP)}", f"s_add_u32 {s(sRD)}, {s(sRD)}, {SL}",
                 f"s_cmp_eq_u32 {s(sRD)}, {ring}", f"s_cmov_b32 {s(sRD)}, 0"], 2, bar-3, ("ring",))
    e2 = shadow([f"s_add_u32 {s(sOFF)}, {s(sOFF)}, {s(sINC)}"], max(dg)+1, n-3, ("off",))
    e2 = shadow([f"s_cmp_eq_u32 {s(sCNT)}, {cfg.R-2}", f"s_cmov_b32 {s(sOFF)}, {s(sNOFF)}",
                 f"s_cselect_b32 {s(sINC)}, {s(sNINC)}, 0x20000",
                 f"s_cselect_b32 {s(S_V+2)}, {s(sNVEND)}, {TOTB + VO_0:#x}"], e2, n-3, ("sw",))
    if withq:
        e2 = shadow([f"s_add_u32 {s(sQM)}, {s(sQM)}, {2*QP}", f"s_add_u32 {s(sQS)}, {s(sQS)}, 0x8000"], max(e2, max(qg)+1), n-2, ("q",))
        shadow([f"s_sub_u32 {s(sCNT)}, {s(sCNT)}, 1", f"s_cmp_lg_u32 {s(sCNT)}, {s(sQSTOP)}"], e2, n-1, ("cnt",))
    else:
        shadow([f"s_sub_u32 {s(sCNT)}, {s(sCNT)}, 1"], max(e2, n-2), n-1, ("cnt",))
    def put(tag, text, cost, lo, hi, prefer_partial=False):
        best = None
        for g in range(lo, hi+1):
            fr = G[g % n].cap - G[g % n].used
            if fr >= cost:
                if not prefer_partial or fr == cost: best = g; break
                if best is None: best = g
        over = best is None
        if over: best = hi
        G[best % n].va.append((tag + (best >= n,), text)); G[best % n].used += cost
        return best
    put(("ak",), f"v_add_u32 {v(VKRD)}, {s(sRD)}, {v(VK0)}", 4, e1, k0, True)
    for j in range(w):
        sb, pb = SB(j, w), PB(j, w)
        st = idx[("QK", j, 3)] + 2
        dl = idx[("PV", j, 0)]
        if dl < st: dl += n
        pl = {}
        g = st
        for e in range(8):
            lo = max(g, st + (4 if e >= 4 else 0))
            pl[e] = g = put(("exp", j), f"v_exp_f32 {v(sb+e)}, {v(sb+e)}", 8, lo, dl - 3)
        for p in range(4):
            lo = max(pl[2*p], pl[2*p+1]) + 1
            put(("cvt", j), f"v_cvt_pk_bf16_f32 {v(pb+p)}, {v(sb+2*p)}, {v(sb+2*p+1)}", 4, lo, dl - 2, True)
    put(("av",), f"v_add_u32 {v(VVRD)}, {s(sRD)}, {v(VV0)}", 4, max(e1, 9), g0 - 1, True)
    return G, idx

def mfma_text(key, w, first=False, mask=None):
    if key[0] == "QK": return qk(key[1], key[2], w)
    if key[0] == "PV": return pv(key[1], key[2], w, first)
    return rs(key[1], w, mask if first else None)

def gap_lines(g, w, first=False, mask=None, drop=lambda tag: False, nomfma=False):
    o = []
    if not nomfma: o.append(mfma_text(g.key, w, first, mask))
    for tag, t in g.sh + g.mem + g.va:
        if not drop(tag): o.append(t)
    return o

def prescale(js, qbase=Q0, tbase=None):
    M = []; C = []
    for j in js:
        tb = O0 + 32*j if tbase is None else tbase
        for h in range(8):
            q = qbase + 16*j + 2*h; t = tb + 4*h
            M.append((f"v_mfma_f32_4x4x4_16b_bf16 {v(t,4)}, {a(AHI,2)}, {v(q,2)}, 0",
                      f"v_mfma_f32_4x4x4_16b_bf16 {v(t,4)}, {a(ALO,2)}, {v(q,2)}, {v(t,4)}"))
            C.append([f"v_cvt_pk_bf16_f32 {v(q)}, {v(t)}, {v(t+1)}", f"v_cvt_pk_bf16_f32 {v(q+1)}, {v(t+2)}, {v(t+3)}"])
    seq = []
    n = len(M)
    for h in range(n + 2):
        if h < n: seq.append(("hi", h))
        if h >= 2: seq.append(("lo", h - 2))
    out = []; ready = []; lo_at = {}
    for k, (kind, h) in enumerate(seq):
        out.append(M[h][0 if kind == "hi" else 1])
        if kind == "lo": lo_at[h] = k
        for hh in list(lo_at):
            if k - lo_at[hh] >= 3: ready += C[hh]; del lo_at[hh]
        if ready: out.append(ready.pop(0))
    for hh in sorted(lo_at): ready += C[hh]
    return out + ready

def epi1(j):
    o = O0 + 32*j; t = T0
    L = [f"v_accvgpr_read_b32 {v(t)}, {a(LACC+4*j)}",
         f"v_subrev_u32 {v(t+1)}, {LO_BITS:#x}, {v(t)}",
         f"v_rcp_f32 {v(t)}, {v(t)}",
         f"v_max_u32 {v(VCHK)}, {v(VCHK)}, {v(t+1)}"]
    for d2 in range(4):
        for dt in (2*d2, 2*d2+1):
            for i in range(2):
                r = o + 4*dt + 2*i
                L.append(f"v_pk_mul_f32 {v(r,2)}, {v(r,2)}, {v(t,2)} op_sel_hi:[1,0]")
        for dt in (2*d2, 2*d2+1):
            r = o + 4*dt
            L.append(f"v_cvt_pk_bf16_f32 {v(r)}, {v(r)}, {v(r+1)}")
            L.append(f"v_cvt_pk_bf16_f32 {v(r+1)}, {v(r+2)}, {v(r+3)}")
        L.append(f"s_add_u32 {s(sT+d2)}, {s(sQOFF)}, {(16*j + 4*d2)*4096}")
        for dt in (2*d2, 2*d2+1):
            L.append(f"ds_write_b64 {v(VOW)}, {v(o+4*dt,2)} offset:{dt*32}")
    for i in range(4):
        L.append(f"ds_read_b128 {v(o+4*i,4)}, {v(VOR)} offset:{i*QP}")
    return L
def epi2(j):
    o = O0 + 32*j
    return [f"buffer_store_dwordx4 {v(o+4*i,4)}, {v(VOO)}, {s(S_O,4)}, {s(sT+i)} offen" for i in range(4)]

def stamp(idx):
    if not cfg.stamp: return []
    return [f"s_memrealtime {s(sST,2)}", f"s_memtime {s(sST+2,2)}", "s_waitcnt lgkmcnt(0)",
            f"v_writelane_b32 {v(ST0)}, {s(sST)}, {idx}", f"v_writelane_b32 {v(ST1)}, {s(sST+2)}, {idx}"]

def tile_group(slot, first=False):
    L = [f"s_add_u32 m0, {s(sWP)}, {slot*SL}"] + [dma(i) for i in range(4)]
    L.append(f"s_add_u32 {s(sOFF)}, {s(sOFF)}, {s(sTINC) if first else '0x20000'}")
    if first: L.append(f"s_mov_b32 {s(S_V+2)}, {TOTB + VO_0:#x}")
    return L
def q_group():
    L = []
    for h in range(2):
        L += [f"s_mov_b32 m0, {s(sQM)}", f"s_add_u32 {s(sQM)}, {s(sQM)}, {2*QP}", qdma(0), qdma(1), f"s_add_u32 {s(sQS)}, {s(sQS)}, 0x8000"]
    return L

def blocks(w):
    G, idx = table(w); GQ, _ = table(w, True)
    n = len(G)
    if cfg.verbose:
        for name, T in (("LOOP", G), ("LOOPQ", GQ)):
            print(f"--- w={w} {name}")
            for i, g in enumerate(T):
                print(i, g.key, g.cap, g.used, [t for _, t in g.sh], [tag for tag, _ in g.mem], [t.split()[0][2:5] + t.split()[1] for _, t in g.va])
    cross = lambda T: sorted(t for g in T for tag, t in g.va + g.mem if tag[0] in ("exp", "cvt", "V") and tag[-1] is True)
    assert cross(G) == cross(GQ), (cross(G), cross(GQ))
    B = {}
    def steady(T):
        one = sum((gap_lines(g, w) for g in T), [])
        two, _ = insert_lgkm(one + ["X_MARK:"] + one + ["X_MARK:"] + one, auto=False)
        i0 = two.index("X_MARK:"); i1 = two.index("X_MARK:", i0 + 1)
        body = two[i0+1:i1]
        pad_hazards(body, prev=body, auto=False)
        _, pend = insert_lgkm(body + body, auto=False)
        return body, pend
    B["LOOP"], pend = steady(G)
    B["LOOPQ"], pendq = steady(GQ)
    assert pend == pendq
    qb = idx[("QK", 0, 0)]
    bar = idx[("QK", w-1, 0)] - 1
    early0 = [t for g in G[qb:] for tag, t in g.va if tag[0] in ("exp", "cvt") and tag[1] == 0]
    for which in (1, 2):
        mask = ONM1 if which == 1 else ONM2
        L = []
        groups = []
        if which == 1:
            groups = ([q_group()] if w == 4 else []) + [tile_group(i) for i in range(1, cfg.R)]
            issued = 16
            def vmw(done): return f"s_waitcnt vmcnt({issued - done})"
            L += [vmw(4), "s_barrier"] + [rdK(x) for x in range(8)] + [rdV(dt, j4) for dt in range(8) for j4 in range(2)]
            L += [vmw(8)] + stamp(3) + rdQ(0) + prescale([0])
            L += [qk(0, x, w) for x in range(8)]
            L += groups.pop(0); issued += 4
            L += early0
        else:
            L += prescale([0]) + [qk(0, x, w) for x in range(8)] + prescale(range(1, w)) + early0
        for i, g in enumerate(G):
            if which == 1 and g.key[0] == "QK" and g.key[2] == 0 and g.key[1] != 0:
                j = g.key[1]
                L += [vmw(8 + 4*j)] + rdQ(j) + prescale([j])
                if j < w - 1:
                    L += groups.pop(0); issued += 4
                else:
                    while groups: L += groups.pop(0); issued += 4
                    L += [vmw(8 + 4*w), "s_barrier"]
            def drop(tag):
                if tag[0] in ("sw", "cnt"): return True
                if tag[0] == "V" and tag[1]: return True
                if which == 1 and tag[0] in ("D", "m0", "off", "bar", "vm"): return True
                return False
            ls = gap_lines(g, w, True, mask, drop)
            if which == 2:
                ls = [f"s_waitcnt vmcnt({int(x[x.index('(')+1:-1]) + 12})" if "vmcnt" in x else x for x in ls]
            L += ls
        L, q = insert_lgkm(L + ["X_MARK:"] + B["LOOP"][:40])
        L = L[:L.index("X_MARK:")]
        B[f"FIRST{which}"] = pad_hazards(L)
        pad_hazards(B["LOOP"], prev=B[f"FIRST{which}"], auto=False)
    for mid in (True, False):
        L = []
        nst = 0
        todo2 = []
        if mid: L += rdQ(0) + (rdQ(3) if w == 3 else [])
        for i, g in enumerate(G):
            def drop(tag):
                if tag[0] in ("sw", "cnt"): return True
                if tag[0] in ("exp", "cvt") and tag[1] == 0 and not tag[2]: return True
                if tag[0] == "V" and not tag[1]: return True
                if not mid and tag[0] in ("K", "D", "m0", "off", "bar", "vm", "ring", "ak", "av"): return True
                return False
            if g.key[0] == "PV" and g.key[2] == 0 and g.key[1] >= 1:
                L += epi1(g.key[1] - 1); todo2 = epi2(g.key[1] - 1)
            ls = gap_lines(g, w, drop=drop, nomfma=(g.key[:2] == ("QK", 0)))
            ls = [f"s_waitcnt vmcnt({int(x[x.index('(')+1:-1]) + nst})" if "vmcnt" in x else x for x in ls]
            if g.key[0] == "PV" and g.key[2] >= 4 and todo2:
                k = 1 + sum(1 for x in ls[1:] if x.startswith("s_") or x == "WAITL")
                ls.insert(k, todo2.pop(0)); nst += 1
            if mid and g.key[0] == "PV" and g.key[1] == w-1:
                ls += [rdV(g.key[2], 0), rdV(g.key[2], 1)]
            if mid and g.key[0] == "QK" and g.key[2] == 7 and g.key[1] != 0:
                ls[1:1] = rdQ(g.key[1])
            L += ls
        L += epi1(w-1) + epi2(w-1)
        if mid: L += ["s_waitcnt lgkmcnt(0)"]
        L, q = insert_lgkm(L, pending=pend)
        B["LASTM" if mid else "LASTE"] = pad_hazards(L, prev=B["LOOP"])
    if cfg.verbose:
        for k, x in B.items(): print(w, k, len(x), "instr, est cycles", estimate(x))
    return B

def param(seg):
    if seg is None: return 0
    sq, q0, w = seg
    assert q0 % 64 == 0
    return CU[sq] | (LEN[sq] << 13) | ((q0 // 64) << 23) | (sq << 27) | ((w - 2) << 30)

def decode(p, base, end, qoff, n, tinc, vend, wreg):
    t = sT
    return [
        f"s_and_b32 {s(t)}, {s(p)}, 0x1fff",
        f"s_bfe_u32 {s(t+1)}, {s(p)}, {13 | (10 << 16)}",
        f"s_bfe_u32 {s(t+2)}, {s(p)}, {27 | (3 << 16)}",
        f"s_lshl1_add_u32 {s(t+2)}, {s(t+2)}, {s(sHB)}",
        f"s_and_b32 {s(t+2)}, {s(t+2)}, 15",
        f"s_lshl4_add_u32 {s(t+2)}, {s(t)}, {s(t+2)}",
        f"s_lshl_b32 {s(base)}, {s(t+2)}, 8",
        f"s_sub_u32 {s(t+3)}, {s(t+1)}, 1",
        f"s_and_b32 {s(t+4)}, {s(t+3)}, 31",
        f"s_add_u32 {s(t+4)}, {s(t+4)}, 1",
        f"s_lshl_b32 {s(tinc)}, {s(t+4)}, 12",
        f"s_add_u32 {s(t+2)}, {s(t)}, {s(t+4)}",
        f"s_lshl_b32 {s(t+2)}, {s(t+2)}, 12",
        f"s_add_u32 {s(vend)}, {s(t+2)}, {VO_0}",
        f"s_add_u32 {s(t+2)}, {s(t)}, {s(t+1)}",
        f"s_lshl_b32 {s(end)}, {s(t+2)}, 12",
        f"s_lshr_b32 {s(wreg)}, {s(p)}, 30",
        f"s_add_u32 {s(wreg)}, {s(wreg)}, 2",
        f"s_mul_i32 {s(t+2)}, {s(wreg)}, {s(sWAVE)}",
        f"s_bfe_u32 {s(t)}, {s(p)}, {23 | (4 << 16)}",
        f"s_lshl2_add_u32 {s(t+2)}, {s(t)}, {s(t+2)}",
        f"s_lshl_b32 {s(t+2)}, {s(t+2)}, 16",
        f"s_add_u32 {s(qoff)}, {s(base)}, {s(t+2)}",
        f"s_lshr_b32 {s(n)}, {s(t+3)}, 5",
        f"s_add_u32 {s(n)}, {s(n)}, 1",
    ]

def build_mask(dst, tailreg):
    L = [f"s_lshl_b64 {s(sT+6,2)}, -1, {s(tailreg)}", f"s_not_b32 {s(sT+6)}, {s(sT+6)}",
         f"v_lshrrev_b32 v0, v12, {s(sT+6)}", f"s_mov_b32 {s(sT+6)}, 0xffff"]
    for x in range(4):
        k = 16*(x >> 1) + 2*(x & 1)
        L += [f"v_bfe_i32 v{1+2*x}, v0, {k}, 1", f"v_bfe_i32 v{2+2*x}, v0, {k+1}, 1"]
    for x in range(4): L.append(f"v_bfi_b32 v{1+2*x}, {s(sT+6)}, v{1+2*x}, v{2+2*x}")
    for x in range(4): L.append(f"v_and_b32 v{1+2*x}, v{1+2*x}, v13")
    for x in range(4): L.append(f"v_accvgpr_write_b32 {a(dst+x)}, v{1+2*x}")
    return L

def lane_g4_ones():
    return ["v_mbcnt_lo_u32_b32 v14, -1, 0", "v_mbcnt_hi_u32_b32 v14, -1, v14",
            "v_lshrrev_b32 v12, 4, v14", "v_lshlrev_b32 v12, 2, v12",
            "v_and_b32 v13, 3, v14", "v_cmp_eq_u32 vcc, 0, v13", "v_mov_b32 v15, 0x3f803f80",
            "v_cndmask_b32 v13, 0, v15, vcc"]

def generate():
    ring, flbase, ldsz = lds_layout()
    roles = cfg.roles
    ws = sorted({sg[2] for r in roles for sg in r if sg}, reverse=True)
    c = math.log2(math.e) / math.sqrt(128.0)
    chi, chif = bf16(c); clo, _ = bf16(c - chif)
    H = [f"; varlen attention forward (bf16, D=128), generated by gen/gen2.py",
         f"; @launch grid=(256,1,1) block=(256,1,1) lds={ldsz}",
         '.amdgcn_target "amdgcn-amd-amdhsa--gfx950"', ".text", f".globl {NAME}_kernel", ".p2align 8",
         f".type {NAME}_kernel,@function", f"{NAME}_kernel:"]
    L = [f"s_load_dwordx4 {s(64,4)}, s[0:1], 0", f"s_load_dwordx2 {s(S_V,2)}, s[0:1], 16", f"s_load_dwordx2 {s(S_O,2)}, s[0:1], 32"]
    if cfg.stamp:
        L += [f"s_load_dwordx2 {s(S_W,2)}, s[0:1], 48", f"s_memrealtime {s(72,2)}", f"s_memtime {s(74,2)}"]
    L += ["s_cmp_ge_u32 s2, 256", "s_cbranch_scc1 L_end",
          "v_lshrrev_b32 v1, 6, v0", "v_and_b32 v0, 63, v0", f"v_readfirstlane_b32 {s(sWAVE)}, v1",
          f"s_and_b32 {s(sHB)}, s2, 7", f"s_bfe_u32 s3, s2, {3 | (1 << 16)}", f"s_lshl1_add_u32 {s(sHB)}, {s(sHB)}, s3",
          "s_lshr_b32 s3, s2, 4",
          f"s_mov_b32 {s(sP1)}, {param(roles[0][0]):#x}", f"s_mov_b32 {s(sP2)}, 0"]
    for r in range(16):
        if r or roles[r][1]: L.append(f"s_cmp_eq_u32 s3, {r}")
        if r: L.append(f"s_cmov_b32 {s(sP1)}, {param(roles[r][0]):#x}")
        if roles[r][1]: L.append(f"s_cmov_b32 {s(sP2)}, {param(roles[r][1]):#x}")
    L += ["v_lshrrev_b32 v2, 4, v0", "v_and_b32 v3, 15, v0",
          "v_lshlrev_b32 v4, 15, v2", "v_lshl_add_u32 v4, v3, 4, v4",
          f"s_lshl_b32 s3, {s(sWAVE)}, 13",
          f"v_add_u32 {v(VO1)}, s3, v4", f"v_add_u32 {v(VO2)}, {4096 - KO1}, {v(VO1)}",
          "v_and_b32 v4, 1, v2", "v_lshlrev_b32 v4, 1, v4", "v_xor_b32 v4, v3, v4",
          "v_lshlrev_b32 v5, 12, v2",
          f"v_lshl_add_u32 {v(VOQ)}, v4, 4, v5", f"v_add_u32 {v(VOQ2)}, {16384 - QP}, {v(VOQ)}",
          f"v_lshl_add_u32 {v(VOO)}, v3, 4, v5",
          f"s_mul_i32 {s(sWP)}, {s(sWAVE)}, {WP}",
          f"s_mul_i32 {s(sQL)}, {s(sWAVE)}, {QW}", f"s_add_u32 {s(sQL)}, {s(sQL)}, {ring}",
          f"s_mov_b32 {s(sEXACT)}, 0", f"s_mov_b32 {s(S_K+2)}, {TOTB:#x}"]
    for r in (S_Q, S_K, S_V, S_O): L.append(f"s_mov_b32 {s(r+3)}, 0x20000")
    L += ["L_restart:"]
    L += decode(sP1, sBASE, S_Q+2, sQOFF, sN, sTINC, S_V+2, sW)
    L += [f"s_mov_b32 {s(sOFF)}, {s(sBASE)}", f"s_mov_b32 {s(sQM)}, {s(sQL)}", f"s_mov_b32 {s(sQS)}, {s(sQOFF)}",
          f"s_mov_b32 {s(S_O+2)}, {s(S_Q+2)}",
          f"s_cmp_lg_u32 {s(sEXACT)}, 0", "s_cbranch_scc1 L_haveptr",
          "s_waitcnt lgkmcnt(0)",
          f"s_mov_b64 {s(S_Q,2)}, {s(64,2)}", f"s_mov_b64 {s(S_K,2)}, {s(66,2)}",
          f"s_sub_u32 {s(S_V)}, {s(S_V)}, {VO_0}", f"s_subb_u32 {s(S_V+1)}, {s(S_V+1)}, 0"]
    if cfg.stamp:
        L += [f"s_mov_b32 {s(S_W+2)}, 0x10000000", f"s_mov_b32 {s(S_W+3)}, 0x20000", f"v_mov_b32 {v(ST0)}, 0", f"v_mov_b32 {v(ST1)}, 0",
              f"v_writelane_b32 {v(ST0)}, s72, 0", f"v_writelane_b32 {v(ST1)}, s74, 0"] + stamp(1)
    L += ["L_haveptr:"]
    L += tile_group(0, True) + q_group() + q_group()
    L += lane_g4_ones()
    L += build_mask(ONM1, sT+4)
    for x in range(4): L.append(f"v_accvgpr_write_b32 {a(ONES+x)}, v13")
    L += ["v_and_b32 v0, 1, v14", "v_lshlrev_b32 v0, 4, v0",
          f"v_mov_b32 v1, {chi:#x}", f"v_mov_b32 v2, {clo:#x}",
          "v_lshlrev_b32 v1, v0, v1", "v_lshlrev_b32 v2, v0, v2",
          "v_bfe_i32 v3, v14, 1, 1",
          "v_and_b32 v4, v1, v3", "v_and_b32 v5, v2, v3",
          "v_xor_b32 v1, v1, v4", "v_xor_b32 v2, v2, v5",
          f"v_accvgpr_write_b32 {a(AHI)}, v1", f"v_accvgpr_write_b32 {a(AHI+1)}, v4",
          f"v_accvgpr_write_b32 {a(ALO)}, v2", f"v_accvgpr_write_b32 {a(ALO+1)}, v5"]
    L += ["v_lshrrev_b32 v2, 4, v14", "v_and_b32 v3, 15, v14",
          "v_bfe_u32 v4, v14, 1, 2", f"v_mul_u32_u24 v4, {WP}, v4",
          "v_and_b32 v5, 1, v14", f"v_mul_u32_u24 v5, {KO1}, v5", "v_add_u32 v4, v4, v5",
          "v_bfe_u32 v5, v14, 3, 1", "v_lshl_add_u32 v4, v5, 8, v4", f"v_lshl_add_u32 {v(VK0)}, v2, 4, v4",
          "v_bfe_u32 v4, v14, 3, 2", f"v_mul_u32_u24 v4, {WP}, v4",
          "v_bfe_u32 v5, v14, 2, 1", f"v_mul_u32_u24 v5, {KO1}, v5", "v_add_u32 v4, v4, v5",
          "v_lshrrev_b32 v5, 5, v14", "v_lshl_add_u32 v4, v5, 8, v4",
          "v_and_b32 v5, 3, v14", f"v_lshl_add_u32 {v(VV0)}, v5, 3, v4",
          f"v_mul_u32_u24 v4, {QP}, v5", "v_bfe_u32 v6, v14, 2, 2", "v_lshl_add_u32 v4, v6, 8, v4",
          "v_bfe_u32 v7, v14, 2, 1", "v_lshlrev_b32 v7, 1, v7", "v_xor_b32 v7, v7, v2", "v_lshl_add_u32 v4, v7, 4, v4",
          f"v_add_u32 {v(VQRD)}, {s(sQL)}, v4",
          "v_lshl_add_u32 v4, v5, 2, v6", "v_mul_u32_u24 v4, 272, v4", "v_lshl_add_u32 v4, v2, 3, v4",
          f"v_add_u32 {v(VOW)}, {s(sQL)}, v4",
          "v_mul_u32_u24 v4, 272, v2", "v_lshl_add_u32 v4, v3, 4, v4", f"v_add_u32 {v(VOR)}, {s(sQL)}, v4",
          f"v_mov_b32 {v(VKRD)}, {v(VK0)}", f"v_mov_b32 {v(VVRD)}, {v(VV0)}", f"v_mov_b32 {v(VCHK)}, 0"]
    for i in range(16): L.append(f"v_mov_b32 {v(C0+i)}, 0")
    L += q_group()
    L += stamp(2)
    L += [f"s_mov_b32 {s(sRD)}, 0", f"s_mov_b32 {s(sINC)}, 0x20000", f"s_sub_u32 {s(sCNT)}, {s(sN)}, 3", f"s_mov_b32 {s(sSEG)}, 0",
          f"s_mov_b32 {s(sNOFF)}, 0x40000000", f"s_mov_b32 {s(sNINC)}, 0", f"s_mov_b32 {s(sNVEND)}, 0", f"s_mov_b32 {s(sW2)}, 0",
          f"s_cmp_eq_u32 {s(sP2)}, 0", "s_cbranch_scc1 L_nonext"]
    L += decode(sP2, sNOFF, sEND2, sQOFF2, sN2, sNINC, sNVEND, sW2)
    L += build_mask(ONM2, sT+4)
    L += [f"s_lshl_b32 {s(sT)}, {s(sW2)}, 1", f"s_sub_u32 {s(sQSTOP)}, {s(sCNT)}, {s(sT)}"]
    L += ["L_nonext:", f"s_cmp_lg_u32 {s(sEXACT)}, 0", "s_cbranch_scc1 L_maxpass", "L_go1:"]
    for w in ws[1:]: L += [f"s_cmp_eq_u32 {s(sW)}, {w}", f"s_cbranch_scc1 L_first1_{w}"]
    L = pad_hazards(L)
    for w in ws:
        B = blocks(w)
        used_first2 = any(r[1] and r[1][2] == w for r in roles)
        used_mid = any(r[1] and r[0][2] == w for r in roles)
        L += [f"L_first1_{w}:"] + B["FIRST1"] + stamp(5)
        if used_mid:
            L += [f"s_cmp_eq_u32 {s(sW2)}, 0", f"s_cbranch_scc1 L_loop_{w}",
                  f"s_mov_b32 {s(sQM)}, {s(sQL)}", f"s_mov_b32 {s(sQS)}, {s(sQOFF2)}", f"s_mov_b32 {s(S_Q+2)}, {s(sEND2)}",
                  ".p2align 6", f"L_loopq_{w}:"] + B["LOOPQ"] + [f"s_cbranch_scc1 L_loopq_{w}"]
        L += [".p2align 6", f"L_loop_{w}:"]
        for u in range(cfg.unroll):
            L += B["LOOP"] + ([f"s_cbranch_scc1 L_out_{w}"] if u < cfg.unroll - 1 else [f"s_cbranch_scc0 L_loop_{w}"])
        L += [f"L_out_{w}:"] + stamp(6)
        if used_mid: L += [f"s_cmp_lg_u32 {s(sW2)}, 0", f"s_cbranch_scc1 L_lastm_{w}"]
        L += B["LASTE"] + ["s_branch L_fin"]
        if used_mid: L += [f"L_lastm_{w}:"] + B["LASTM"] + ["s_branch L_switch"]
        if used_first2: L += [f"L_first2_{w}:"] + B["FIRST2"] + stamp(5) + [f"s_branch L_loop_{w}"]
    T = ["L_switch:"] + stamp(7)
    if cfg.stamp:
        for i in (5, 6, 7):
            T += [f"v_readlane_b32 {s(sST)}, {v(ST0)}, {i}", f"v_readlane_b32 {s(sST+1)}, {v(ST1)}, {i}", "s_nop 3",
                  f"v_writelane_b32 {v(ST0)}, {s(sST)}, {i+8}", f"v_writelane_b32 {v(ST1)}, {s(sST+1)}, {i+8}"]
    T += [f"s_mov_b32 {s(sW)}, {s(sW2)}", f"s_mov_b32 {s(sW2)}, 0", f"s_mov_b32 {s(sQOFF)}, {s(sQOFF2)}", f"s_mov_b32 {s(S_O+2)}, {s(sEND2)}",
          f"s_mov_b32 {s(sN)}, {s(sN2)}", f"s_mov_b32 {s(sBASE)}, {s(sNOFF)}", f"s_mov_b32 {s(sTINC)}, {s(sNINC)}",
          f"s_sub_u32 {s(sCNT)}, {s(sN2)}, 3", f"s_mov_b32 {s(sNOFF)}, 0x40000000", f"s_mov_b32 {s(sSEG)}, 1",
          f"s_cmp_lg_u32 {s(sEXACT)}, 0", "s_cbranch_scc1 L_maxpass", "L_go2:"]
    w2s = [w for w in ws if any(r[1] and r[1][2] == w for r in roles)]
    for w in w2s[:-1]: T += [f"s_cmp_eq_u32 {s(sW)}, {w}", f"s_cbranch_scc1 L_first2_{w}"]
    if w2s: T += [f"s_branch L_first2_{w2s[-1]}"]
    T += ["L_fin:"] + stamp(7)
    T += [f"v_cmp_lt_u32 vcc, {(0 if cfg.force_exact else HI_BITS - LO_BITS):#x}, {v(VCHK)}",
          f"s_lshl_b32 {s(sT+1)}, {s(sWAVE)}, 2", f"s_add_u32 {s(sT+1)}, {s(sT+1)}, {flbase}",
          "s_cmp_lg_u64 vcc, 0", f"s_cselect_b32 {s(sT)}, 1, 0",
          f"v_mov_b32 {v(T0)}, {s(sT)}", f"v_mov_b32 {v(T0+1)}, {s(sT+1)}",
          f"ds_write_b32 {v(T0+1)}, {v(T0)}", f"v_mov_b32 {v(T0+1)}, {flbase}",
          "s_waitcnt lgkmcnt(0)", "s_barrier",
          f"ds_read_b128 {v(P0,4)}, {v(T0+1)}", "s_waitcnt lgkmcnt(0)",
          f"v_or3_b32 {v(T0)}, {v(P0)}, {v(P0+1)}, {v(P0+2)}", f"v_or_b32 {v(T0)}, {v(T0)}, {v(P0+3)}",
          f"v_readfirstlane_b32 {s(sT)}, {v(T0)}",
          f"s_andn2_b32 {s(sT)}, {s(sT)}, {s(sEXACT)}", "s_cbranch_scc1 L_redo"]
    if cfg.stamp:
        T += ["s_waitcnt vmcnt(0)"] + stamp(9)
        T += [f"s_lshl_b32 {s(sT)}, s2, 2", f"s_add_u32 {s(sT)}, {s(sT)}, {s(sWAVE)}", f"s_lshl_b32 {s(sT)}, {s(sT)}, 9",
              "v_mbcnt_lo_u32_b32 v0, -1, 0", "v_mbcnt_hi_u32_b32 v0, -1, v0", "v_lshlrev_b32 v0, 2, v0",
              f"buffer_store_dword {v(ST0)}, v0, {s(S_W,4)}, {s(sT)} offen",
              f"buffer_store_dword {v(ST1)}, v0, {s(S_W,4)}, {s(sT)} offen offset:256"]
        if cfg.probe:
            T += [f"v_readlane_b32 {s(sT)}, {v(ST0)}, {cfg.probe[0]}", "s_nop 3", f"s_sub_u32 {s(sT)}, {s(sT)}, s72",
                  f"s_mul_i32 {s(sT)}, {s(sT)}, {cfg.probe[1]}", f"s_min_u32 {s(sT)}, {s(sT)}, 50000", "L_spin:",
                  f"s_memrealtime {s(sST,2)}", "s_waitcnt lgkmcnt(0)", f"s_sub_u32 {s(sST)}, {s(sST)}, s72",
                  f"s_cmp_lt_u32 {s(sST)}, {s(sT)}", "s_cbranch_scc1 L_spin"]
    T += ["L_end:", "s_endpgm",
          "L_redo:", f"s_mov_b32 {s(sEXACT)}, 1", "s_waitcnt vmcnt(0)", "s_barrier", "s_branch L_restart"]
    QX, SX, MX, AQ, AK = 64, 0, 32, 40, 41
    T += ["L_maxpass:", "s_nop 1",
          "v_mbcnt_lo_u32_b32 v36, -1, 0", "v_mbcnt_hi_u32_b32 v36, -1, v36",
          "v_lshrrev_b32 v37, 4, v36", "v_lshlrev_b32 v37, 4, v37",
          "v_and_b32 v38, 15, v36", f"v_lshl_add_u32 {v(AK)}, v38, 12, v37",
          "v_and_b32 v38, 3, v36", "v_bfe_u32 v39, v36, 2, 2", "v_lshl_add_u32 v38, v38, 2, v39",
          f"v_lshl_add_u32 {v(AQ)}, v38, 12, v37"]
    for j in range(4):
        T.append(f"s_add_u32 {s(sT)}, {s(sQOFF)}, {16*j*4096}")
        for st in range(4):
            T.append(f"buffer_load_dwordx4 {v(QX+16*j+4*st,4)}, {v(AQ)}, {s(S_Q,4)}, {s(sT)} offen offset:{64*st}")
        T.append(f"v_mov_b32 {v(MX+j)}, 0xff800000")
    T.append("s_waitcnt vmcnt(0)")
    for j in range(4): T += prescale([j], QX, SX)
    T += [f"s_mov_b32 {s(sT)}, {s(sBASE)}", f"s_mov_b32 {s(sT+1)}, {s(sN)}", f"s_mov_b32 {s(sT+2)}, {s(sTINC)}", "L_maxloop:",
          f"s_add_u32 {s(sT+3)}, {s(sT)}, {16*4096}"]
    for x in range(8):
        T.append(f"buffer_load_dwordx4 {a(KX+4*x,4)}, {v(AK)}, {s(S_K,4)}, {s(sT + (3 if x >= 4 else 0))} offen offset:{64*(x%4)}")
    T.append("s_waitcnt vmcnt(0)")
    for j in range(4):
        for x in range(8):
            d = v(SX + 8*j + 4*(x//4), 4)
            T.append(m16(d, a(KX+4*x,4), v(QX+16*j+4*(x%4),4), d if x % 4 else "0"))
    T.append("s_nop 8")
    for i in range(4):
        for j in range(4):
            T.append(f"v_max3_f32 {v(MX+j)}, {v(MX+j)}, {v(SX+8*j+2*i)}, {v(SX+8*j+2*i+1)}")
    T += [f"s_add_u32 {s(sT)}, {s(sT)}, {s(sT+2)}", f"s_mov_b32 {s(sT+2)}, 0x20000",
          f"s_sub_u32 {s(sT+1)}, {s(sT+1)}, 1", f"s_cmp_lg_u32 {s(sT+1)}, 0", "s_cbranch_scc1 L_maxloop"]
    for j in range(4):
        for sw in ("v_permlane16_swap_b32", "v_permlane32_swap_b32"):
            T += [f"v_mov_b32 v36, {v(MX+j)}", f"{sw} {v(MX+j)}, v36", "s_nop 1", f"v_max_f32 {v(MX+j)}, {v(MX+j)}, v36"]
        for i in range(4): T.append(f"v_sub_f32 {v(C0+4*j+i)}, 0, {v(MX+j)}")
    T += ["s_nop 1", f"s_cmp_eq_u32 {s(sSEG)}, 0", "s_cbranch_scc1 L_go1", "s_branch L_go2"]
    L += pad_hazards(T)
    F = ['.section .rodata,"a"', ".p2align 6", f".amdhsa_kernel {NAME}_kernel",
         f"  .amdhsa_next_free_vgpr {256 + NAGPR}", "  .amdhsa_next_free_sgpr 102", "  .amdhsa_accum_offset 256",
         "  .amdhsa_group_segment_fixed_size 0", "  .amdhsa_kernarg_size 56", "  .amdhsa_user_sgpr_count 2",
         "  .amdhsa_user_sgpr_kernarg_segment_ptr 1", "  .amdhsa_system_sgpr_workgroup_id_x 1", ".end_amdhsa_kernel"]
    body = [x if (x.endswith(":") or x.startswith(".")) else "    " + x for x in L]
    return "\n".join(H + body + F) + "\n"

ROLES_34 = [
    ((3, 0, 3), (4, 0, 3)), ((3, 192, 3), (4, 192, 3)), ((1, 0, 4), (1, 256, 4)), ((7, 384, 3), (2, 0, 4)),
    ((3, 384, 3), (7, 0, 3)), ((3, 576, 3), (7, 192, 3)),
    ((0, 0, 4), None), ((0, 256, 4), None), ((0, 512, 4), None), ((0, 768, 4), None),
    ((2, 256, 4), (5, 0, 4)), ((4, 384, 4), (5, 256, 3)),
    ((6, 0, 4), None), ((6, 256, 4), None), ((6, 512, 4), None), ((6, 768, 3), None),
]
def check_roles(roles):
    for sq in range(8):
        cov = sorted((sg[1], sg[1] + 64*sg[2]) for r in roles for sg in r if sg and sg[0] == sq)
        e = 0
        for lo, hi in cov:
            assert lo == e, (sq, cov); e = hi
        assert e >= LEN[sq], (sq, cov)
    for r in roles:
        if r[1]: assert (LEN[r[0][0]] + 31)//32 - 2 - 2*r[1][2] >= 3, r

if __name__ == "__main__":
    import argparse
    ap = argparse.ArgumentParser()
    ap.add_argument("-o", default="cdna_kernels/" + NAME + ".s")
    ap.add_argument("--stamp", action="store_true")
    ap.add_argument("--force-exact", action="store_true")
    ap.add_argument("-v", action="store_true")
    ap.add_argument("--probe", default=None)
    ap.add_argument("--unroll", type=int, default=1)
    args = ap.parse_args()
    cfg.stamp = args.stamp; cfg.force_exact = args.force_exact; cfg.verbose = args.v; cfg.unroll = args.unroll
    if args.probe: cfg.probe = tuple(int(x) for x in args.probe.split(","))
    cfg.roles = ROLES_34
    check_roles(cfg.roles)
    open(args.o, "w").write(generate())
```
